```python
import torch

def _softmax(x, axis=-1):
    return torch.softmax(x, dim=axis)
def _gelu(x):
    return torch.nn.functional.gelu(x, approximate="tanh")
def _silu(x):
    return torch.nn.functional.silu(x)
def _sigmoid(x):
    return torch.sigmoid(x)
def _layernorm(x, axis=-1, eps=1e-5):
    m = x.mean(dim=axis, keepdim=True)
    v = x.var(dim=axis, keepdim=True, unbiased=False)
    return (x - m) / torch.sqrt(v + eps)
def _scatter_add(tgt, idx, src, axis=0):
    return tgt.clone().index_add_(axis, idx, src)
def _segment_sum(src, seg, n):
    out = torch.zeros((n,) + src.shape[1:], dtype=src.dtype)
    return out.index_add_(0, seg, src)
def _pad(x, pw):
    flat = tuple(v for pair in reversed(pw) for v in pair)
    return torch.nn.functional.pad(x, flat)

kernel_name = 'standalone__attention_interact_autoint__recsys'

def setup_inputs():

    _w = (lambda a: (lambda t: t.to(torch.bfloat16) if t.is_floating_point() else t)(torch.as_tensor(a)))
    B, F = 4096, 100
    D = max(2, (128 // 2) * 2)
    H = 2
    Dh = D // H
    return {
        "e": _w((lambda *s: torch.randn(*s, dtype=torch.bfloat16) * 0.05)(B, F, D).to(float)),
        "wq": _w((lambda *s: torch.randn(*s, dtype=torch.bfloat16) * 1.6)(H, D, Dh).to(float)),
        "wk": _w((lambda *s: torch.randn(*s, dtype=torch.bfloat16) * 1.6)(H, D, Dh).to(float)),
        "wv": _w((lambda *s: torch.randn(*s, dtype=torch.bfloat16) * 0.05)(H, D, Dh).to(float)),
        "wres": _w((lambda *s: torch.randn(*s, dtype=torch.bfloat16) * 0.05)(D, D).to(float)),
    }

def reference(e, wq, wk, wv, wres):
    H, D, Dh = wq.shape[0], wq.shape[1], wq.shape[2]
    B, F = e.shape[0], e.shape[1]
    q = torch.einsum('bfd,hdk->bhfk', e, wq)
    k = torch.einsum('bfd,hdk->bhfk', e, wk)
    v = torch.einsum('bfd,hdk->bhfk', e, wv)
    scale = float(Dh) ** -0.5
    scores = torch.einsum('bhfk,bhgk->bhfg', q, k) * scale
    attn = _softmax(scores, axis=-1)
    attn = (lambda x, dt: x.to(dt))(attn, v.dtype)
    ctx = torch.einsum('bhfg,bhgk->bhfk', attn, v)
    ctx = (lambda x, *d: x.permute(*d))(ctx, 0, 2, 1, 3).reshape(B, F, H * Dh)
    res = torch.einsum('bfd,de->bfe', e, wres)
    out = ctx + res
    mask = (lambda x, dt: x.to(dt))(out > 0, out.dtype)
    return out * mask
```

```python
VEC = dict(M=8, Z=12, B=4, V=4, T=8, P=8, D=4, W=24, w=12, L=8, S=8, X=0)
PIPE = dict(M=16, Z=16, B=32)
PASSES = dict(M=4, Z=4, B=8)
MFMA = "MZB"
VALU = "VTP"
MEM = "DWwLS"
DS_LAT = 140
MFMA_RES_WS = {4: 8, 8: 12}
MFMA_OVL_WS = {4: 6, 8: 10}
MFMA_CWAR_WS = {4: 3, 8: 7}


def v(a, n=1):
    return [("v", a + i) for i in range(n)]


def a(x, n=1):
    return [("a", x + i) for i in range(n)]


def s(x, n=1):
    return [("s", x + i) for i in range(n)]


def vr(x, n):
    return f"v{x}" if n == 1 else f"v[{x}:{x+n-1}]"


def ar(x, n):
    return f"a{x}" if n == 1 else f"a[{x}:{x+n-1}]"


class Op:
    def __init__(self, kind, text, rd=(), wr=(), cd=None, unit=0, tag="", dpp=False, wait=None, nops=1):
        self.kind = kind
        self.text = text
        self.rd = list(rd)
        self.wr = list(wr)
        self.cd = list(cd) if cd else []
        self.unit = unit
        self.tag = tag
        self.dpp = dpp
        self.wait = wait
        self.nops = nops
        self.extra = []
        self.slack = 0
        self.earliest = None
        self.preds = []
        self.succs = []
        self.idx = None
        self.t = None

    def after(self, pred, ws=0, cyc=0):
        self.extra.append((pred, ws, cyc))
        return self


def is_vgpr(r):
    return isinstance(r, tuple) and r[0] in "va"


def raw_ws(p, c, r):
    if p.kind in MFMA:
        n = PASSES[p.kind]
        if c.kind in MFMA and r in c.cd and r not in c.rd:
            if c.cd == p.wr and PASSES[c.kind] == n:
                return 0
            return MFMA_OVL_WS[n]
        return MFMA_RES_WS[n]
    if p.kind in VALU:
        if is_vgpr(r):
            w = 0
            if c.kind in MFMA:
                w = 2
            if c.kind == "P" or c.dpp:
                w = 2
            if p.kind == "T" and c.kind in "VP":
                w = max(w, 1)
            if "readfirstlane" in c.text or "readlane" in c.text:
                w = max(w, 1)
            return w
        if c.kind in MEM:
            return 5
        if c.kind in VALU:
            return 2
        return 2
    if p.kind == "X" and r == "m0" and c.kind == "L":
        return 1
    return 0


def waw_ws(p, c, r):
    if p.kind in MFMA:
        if c.kind in MFMA:
            return 0 if PASSES[c.kind] >= PASSES[p.kind] else MFMA_OVL_WS[PASSES[p.kind]]
        return MFMA_RES_WS[PASSES[p.kind]]
    return 0


def war_ws(p, c, r):
    if p.kind in MFMA and r in p.cd and c.kind not in MFMA:
        return MFMA_CWAR_WS[PASSES[p.kind]]
    if p.kind in "SW" and is_vgpr(r):
        return 2
    return 0


def raw_cyc(p, c):
    if p.kind == "T" and c.kind in VALU:
        return 12
    return 0


def build_deps(ops):
    last_w = {}
    readers = {}
    for o in ops:
        o.preds = []
        o.succs = []
    for o in ops:
        d = {}

        def add(p, ws, cyc):
            if p is o:
                return
            w0, c0 = d.get(id(p), (p, 0, 0))[1:]
            d[id(p)] = (p, max(ws, w0), max(cyc, c0))

        for r in o.rd + o.cd:
            p = last_w.get(r)
            if p is not None:
                add(p, raw_ws(p, o, r), raw_cyc(p, o))
        for r in o.wr:
            p = last_w.get(r)
            if p is not None:
                add(p, waw_ws(p, o, r), 0)
            for q in readers.get(r, []):
                add(q, war_ws(q, o, r), 0)
        for p, ws, cyc in o.extra:
            add(p, ws, cyc)
        if o.earliest is not None:
            add(o.earliest, 0, 0)
        for r in o.rd + o.cd:
            readers.setdefault(r, []).append(o)
        for r in o.wr:
            last_w[r] = o
            readers[r] = []
        o.preds = list(d.values())
    inset = {id(o) for o in ops}
    for o in ops:
        o.preds = [x for x in o.preds if id(x[0]) in inset]
        for p, ws, cyc in o.preds:
            p.succs.append((o, ws, cyc))


def deadlines(ops, backbone):
    t = 0
    for m in backbone:
        m.dl = t
        t += PIPE[m.kind]
    end = t + 400
    for o in reversed(ops):
        if o.kind in MFMA:
            continue
        dl = end
        for c, ws, cyc in o.succs:
            dist = max((ws + 1) * 5, cyc, VEC[o.kind], 4)
            dl = min(dl, c.dl - dist)
        o.dl = dl + o.slack


class Sched:
    def __init__(self, ops, backbone=None):
        self.ops = ops
        self.backbone = backbone if backbone is not None else [o for o in ops if o.kind in MFMA]
        build_deps(ops)
        pos = {id(o): i for i, o in enumerate(self.backbone)}
        for m in self.backbone:
            for p, _, _ in m.preds:
                if p.kind in MFMA:
                    assert pos[id(p)] < pos[id(m)], (p.text, m.text)
        deadlines(ops, self.backbone)
        self.out = []
        self.t = 0
        self.idx = 0
        self.vec_free = 0
        self.pipe_free = 0
        self.valu_end = -100
        self.npend = {id(o): len(o.preds) for o in ops}
        self.avail = [o for o in ops if not o.preds and o.kind not in MFMA]
        for i, o in enumerate(ops):
            o.order = i
            o.idx = None
        self.stall = []

    def start_time(self, o):
        if o.kind == "X":
            st = self.t
        else:
            st = max(self.t, self.vec_free)
            if o.kind in MFMA:
                st = max(st, self.pipe_free)
            if o.kind in MEM:
                st = max(st, self.valu_end + 8)
        return st

    def ws_short(self, o):
        need = 0
        for p, ws, _ in o.preds:
            need = max(need, ws - (self.idx - p.idx - p.nops))
        return need

    def cyc_ready(self, o):
        r = 0
        for p, _, cyc in o.preds:
            if cyc:
                r = max(r, p.t + cyc)
        return r

    def issue(self, o):
        st = max(self.start_time(o), self.cyc_ready(o) if o.preds else 0)
        o.t = st
        o.idx = self.idx
        self.idx += o.nops
        self.t = st + 4 * o.nops
        if o.kind != "X":
            self.vec_free = st + VEC[o.kind]
        if o.kind in MFMA:
            self.pipe_free = st + PIPE[o.kind]
        if o.kind in VALU:
            self.valu_end = st + VEC[o.kind]
        if o.kind == "S":
            self.pipe_free = max(self.pipe_free, st + 20)
        self.out.append(o)
        if o in self.avail:
            self.avail.remove(o)
        for c, _, _ in o.succs:
            self.npend[id(c)] -= 1
            if self.npend[id(c)] == 0 and c.kind not in MFMA:
                self.avail.append(c)

    def nop(self, n=1):
        o = Op("X", f"s_nop {n-1}", nops=n, tag="nop")
        o.unit = self.out[-1].unit if self.out else 0
        self.issue(o)

    def ready(self, kinds):
        r = []
        for o in self.avail:
            if o.kind in kinds and self.ws_short(o) == 0 and self.cyc_ready(o) <= self.start_time(o):
                r.append(o)
        r.sort(key=lambda o: (o.dl, o.order))
        return r

    def fill(self, nxt):
        while True:
            limit = self.pipe_free
            if self.t + 4 <= self.vec_free:
                xs = self.ready("X")
                if xs:
                    self.issue(xs[0])
                    continue
                blocked = [o for o in self.avail if o.kind != "X" and 0 < self.ws_short(o)]
                if nxt is not None and self.npend[id(nxt)] == 0 and self.ws_short(nxt) > 0:
                    blocked.append(nxt)
                if blocked and self.want_nop(blocked):
                    self.nop()
                    continue
            now = max(self.t, self.vec_free)
            room = limit - now
            if room < 4:
                return
            cands = []
            for o in self.ready(VALU + MEM):
                st = self.start_time(o)
                if o.kind in MEM and st > now:
                    continue
                if o.kind in "SWw":
                    if room >= 8:
                        cands.append(o)
                    continue
                if VEC[o.kind] <= room:
                    cands.append(o)
            if not cands:
                xs = self.ready("X")
                if xs and self.t + 4 <= limit:
                    self.issue(xs[0])
                    continue
                return
            pick = cands[0]
            if room == 8:
                mems = [o for o in cands if o.kind == "D"]
                small = [o for o in cands if VEC[o.kind] == 4]
                big = [o for o in cands if VEC[o.kind] >= 8]
                if VEC[pick.kind] == 4:
                    if len(small) < 2 and big and pick.dl > big[0].dl - 64 and not self.unlocks(pick):
                        pick = big[0]
                    elif pick.kind != "D" and mems and len(small) >= 2 and small[1].kind == "D":
                        pick = small[1]
            self.issue(pick)

    def unlocks(self, o):
        for c, ws, cyc in o.succs:
            if self.npend[id(c)] == 1 and c.kind == "V" and ws == 0 and cyc == 0:
                return True
        return False

    def want_nop(self, blocked):
        nready = len(self.ready(VALU + MEM))
        return nready < 2

    def force(self, target):
        while self.npend[id(target)] > 0 or self.ws_short(target) > 0:
            c = self.ready(VALU + MEM + "X")
            if c:
                now = max(self.t, self.vec_free)
                good = [o for o in c if not (o.kind in MEM and self.start_time(o) > now)]
                if good and good[0].dl <= c[0].dl + 48:
                    c = good
                self.issue(c[0])
                continue
            cyc = [o for o in self.avail if self.ws_short(o) == 0]
            wsb = [o for o in self.avail if self.ws_short(o) > 0]
            if self.npend[id(target)] == 0:
                self.nop()
            elif cyc and (not wsb or min(o.dl for o in cyc) <= min(o.dl for o in wsb)):
                cyc.sort(key=lambda o: (o.dl, o.order))
                self.issue(cyc[0])
            elif wsb:
                self.nop()
            else:
                raise RuntimeError("deadlock before " + target.text + " tag " + target.tag)

    def run(self):
        bb = self.backbone
        for i, m in enumerate(bb):
            ideal = self.pipe_free
            self.force(m)
            self.issue(m)
            self.stall.append(m.t - ideal)
            self.fill(bb[i + 1] if i + 1 < len(bb) else None)
        while self.avail:
            c = self.ready(VALU + MEM + "X")
            if c:
                self.issue(c[0])
                continue
            cyc = [o for o in self.avail if self.ws_short(o) == 0]
            if cyc:
                cyc.sort(key=lambda o: (o.dl, o.order))
                self.issue(cyc[0])
            else:
                self.nop()
        assert all(o.idx is not None for o in self.ops)
        return self.out


def merge_nops(seq):
    out = []
    for o in seq:
        if o.tag == "nop" and out and out[-1].tag == "nop" and out[-1].nops + o.nops <= 16:
            n = out[-1].nops + o.nops
            m = Op("X", f"s_nop {n-1}", nops=n, tag="nop", unit=o.unit)
            m.t = out[-1].t
            out[-1] = m
        else:
            out.append(o)
    return out


def resolve_waits(seq):
    pos = {id(o): i for i, o in enumerate(seq)}
    for i, o in enumerate(seq):
        if not o.wait:
            continue
        cnt, targets = o.wait
        kinds = "DWw" if cnt == "lgkm" else "LS"
        known = [pos[id(x)] for x in targets if id(x) in pos]
        if len(known) != len(targets):
            n = 0
        else:
            last = max(known)
            assert last < i
            n = sum(1 for x in seq[last + 1:i] if x.kind in kinds)
        if cnt == "lgkm":
            o.text = f"s_waitcnt lgkmcnt({min(n, 15)})"
        else:
            o.text = f"s_waitcnt vmcnt({min(n, 63)})"


def check_hazards(seq, name=""):
    import re
    last_w = {}
    readers = {}
    pend = []
    idx = 0
    bad = 0
    for o in seq:
        def need(entry, ws, what, r):
            nonlocal bad
            p, pi = entry
            have = idx - pi - p.nops
            if have < ws:
                bad += 1
                print(f"HAZARD[{name}] {what} {r}: '{p.text}' -> '{o.text}' have {have} need {ws}")
        for r in o.rd + o.cd:
            if r in last_w:
                need(last_w[r], raw_ws(last_w[r][0], o, r), "RAW", r)
        for r in o.wr:
            if r in last_w:
                need(last_w[r], waw_ws(last_w[r][0], o, r), "WAW", r)
            for e in readers.get(r, []):
                need(e, war_ws(e[0], o, r), "WAR", r)
        m = re.search(r"lgkmcnt\((\d+)\)", o.text)
        if m:
            n = int(m.group(1))
            pend = pend[len(pend) - n:] if n else []
        elif not o.wait:
            touched = set(r for r in o.rd + o.cd + o.wr if is_vgpr(r))
            for p in pend:
                hit = touched & set(p.wr)
                if hit and not (o.kind == "D" and not (set(o.rd) & set(p.wr))):
                    bad += 1
                    print(f"HAZARD[{name}] unwaited LDS load '{p.text}' used by '{o.text}'")
        if o.kind in "DWw":
            pend.append(o)
        if not o.wait:
            for r in o.rd + o.cd:
                readers.setdefault(r, []).append((o, idx))
            for r in o.wr:
                last_w[r] = (o, idx)
                readers[r] = []
        idx += o.nops
    return bad
```

```python
import struct
import sys
from lsched import *

NAME = "standalone__attention_interact_autoint__recsys"
BATCH_BYTES = 25600
TOTAL_BYTES = 4096 * BATCH_BYTES

PIECE = 1088
TILE = 4 * PIECE
EBSZ = 24 * PIECE
ZERO = 0
EB0 = 512
TG0 = EB0 + 2 * EBSZ
TG1 = TG0 + 2 * TILE
EB1 = TG1 + 2 * TILE
PARK = EB1 + 2 * EBSZ
LDS_END = PARK + 4 * 10240
LDS_BYTES = 163840
assert LDS_END <= LDS_BYTES
EDELTA = EB1 - EB0
WSTG = TG1
assert WSTG + 6 * 16384 <= LDS_BYTES
WQSTG = EB0 + 8 * PIECE
assert 8 * PIECE + 16384 <= EBSZ
P_KT, P_QT, P_VT, P_R01, P_R23 = 0, 2048, 4096, 6144, 8192

WK, WV, WQ, WR = 0, 64, 128, 192


def wfrag(base, c, st):
    return base + (c * 4 + st) * 4


KB = 0
VB = 56
VT = 104
ONES = 112
XB = [116, 132]
SB = 148
PB = 176
QB = 192
CX = 200
RS = 216
ACC = [232, 236, 240]
vIDX, vE, vST, vSTT, vDMA, vKT, vQT, vVT, vCHK, vINV, vTE, vPW = range(244, 256)

sWID, sH, sP = 3, 4, 5
sU, sOB, sST, sDG, sDL, sDT, sSUM, sDELTA, sMASK, sTMP, sTHR, sOUTSZ = range(32, 44)
sT0, sT1, sT2, sT3, sC, sINC = range(44, 50)

THRESH = 2.0 ** 30
QSCALE = 1.4426950408889634 / 8.0


def f32bits(x):
    return struct.unpack("<I", struct.pack("<f", x))[0]


def Kf(t, u):
    return KB + t * 8 + u * 4


def Vf(step, c):
    return VB + step * 16 + c * 4


class Prog:
    def __init__(self):
        self.ops = []
        self.unit = 0
        self.tag = ""
        self.nacc = 0

    def add(self, o):
        o.unit = self.unit
        if not o.tag:
            o.tag = self.tag
        self.ops.append(o)
        return o

    def mfma(self, d, A, B, first):
        fa = vr(A[1], 4) if A[0] == "v" else ar(A[1], 4)
        fb = vr(B[1], 4) if B[0] == "v" else ar(B[1], 4)
        rd = [(A[0], A[1] + i) for i in range(4)] + [(B[0], B[1] + i) for i in range(4)]
        c = "0" if first else vr(d, 4)
        return self.add(Op("M", f"v_mfma_f32_16x16x32_bf16 {vr(d,4)}, {fa}, {fb}, {c}", rd, v(d, 4),
                           None if first else v(d, 4)))

    def smf(self, d, A, B, idx):
        return self.add(Op("Z", f"v_smfmac_f32_16x16x64_bf16 {vr(d,4)}, {vr(A,4)}, {vr(B,8)}, v{idx}",
                           v(A, 4) + v(B, 8) + v(idx), v(d, 4), v(d, 4)))

    def valu(self, text, rd, wr, kind="V", **kw):
        return self.add(Op(kind, text, rd, wr, **kw))

    def cvt(self, d, x, y):
        if y is None:
            return self.valu(f"v_cvt_pk_bf16_f32 v{d}, v{x}, 0", v(x), v(d))
        return self.valu(f"v_cvt_pk_bf16_f32 v{d}, v{x}, v{y}", v(x) + v(y), v(d))

    def sal(self, text, rd, wr, **kw):
        return self.add(Op("X", text, rd, wr, **kw))

    def dsr(self, mn, d, n, addr, off, mem):
        return self.add(Op("D", f"{mn} {vr(d,n)}, v{addr} offset:{off}", v(addr) + [mem], v(d, n)))

    def dsw(self, src, addr, off, mem):
        return self.add(Op("W", f"ds_write_b128 v{addr}, {vr(src,4)} offset:{off}", v(addr) + v(src, 4), [mem]))

    def waitl(self, reads):
        regs = [r for o in reads for r in o.wr if is_vgpr(r)]
        w = Op("X", "s_waitcnt lgkmcnt(?)", regs, regs, wait=("lgkm", list(reads)))
        for o in reads:
            w.after(o, 0, DS_LAT)
        return self.add(w)

    def acc(self):
        r = ACC[self.nacc % len(ACC)]
        self.nacc += 1
        return r

    def load_e(self, x, t, addr=vE, mem="E"):
        rs = [self.dsr("ds_read_b128", x + 4 * st, 4, addr, t * TILE + st * 64, mem) for st in range(4)]
        return rs, self.waitl(rs)

    def proj_t(self, w, x, dst):
        first = None
        for c in range(4):
            d = self.acc()
            for st in range(4):
                m = self.mfma(d, ("a", wfrag(w, c, st)), ("v", x + 4 * st), st == 0)
                first = first or m
            self.cvt(dst + 2 * c, d, d + 1)
            self.cvt(dst + 2 * c + 1, d + 2, d + 3)
        return first

    def proj_v(self, x, dstf):
        first = None
        for c in range(4):
            d = self.acc()
            for st in range(4):
                m = self.mfma(d, ("v", x + 4 * st), ("a", wfrag(WV, c, st)), st == 0)
                first = first or m
            self.cvt(dstf(c), d, d + 1)
            self.cvt(dstf(c) + 1, d + 2, d + 3)
        return first

    def proj_r(self, x, dst):
        for c in range(4):
            for st in range(4):
                self.mfma(dst + 4 * c, ("a", wfrag(WR, c, st)), ("v", x + 4 * st), st == 0)

    def scores(self):
        for t in (6, 0, 1, 2, 3, 4, 5):
            for u in range(2):
                self.mfma(SB + 4 * t, ("v", Kf(t, u)), ("v", QB + 4 * u), u == 0)
        r = SB + 24
        self.valu(f"v_exp_f32 v{r}, v{r}", v(r), v(r), "T")
        self.cvt(PB + 12, r, None)
        for t in range(6):
            for i in range(4):
                r = SB + 4 * t + i
                self.valu(f"v_exp_f32 v{r}, v{r}", v(r), v(r), "T")
                if i & 1:
                    self.cvt(PB + 2 * t + (i >> 1), r - 1, r)

    def pv(self, order):
        seen = set()
        for item in order:
            if item == "z0":
                self.smf(SB + 24, ONES, PB, vIDX)
            elif item == "z1":
                self.smf(SB + 24, ONES, PB + 8, vIDX)
            else:
                c, step = item
                A = Vf(step, c) if step < 3 else VT + 2 * c
                self.mfma(CX + 4 * c, ("v", A), ("v", PB + 4 * step), c not in seen)
                seen.add(c)

    def epilogue(self, n):
        l = SB + 25
        self.valu(f"v_add_f32 v{l}, v{l}, v{l+1}", v(l, 2), v(l))
        self.valu(f"v_rcp_f32 v{vINV}, v{l}", v(l), v(vINV), "T")
        self.valu(f"v_max3_f32 v{vCHK}, v{vCHK}, v{l}, v{vINV}", v(vCHK) + v(l) + v(vINV), v(vCHK))
        return self.finish(n)

    def finish(self, n, voff=None):
        self.sal(f"s_add_u32 s{sST}, s{sOB}, {n*4096}", s(sOB), s(sST))
        stores = []
        for m in range(2):
            b = CX + 8 * m
            for i in range(8):
                self.valu(f"v_fma_f32 v{b+i}, v{b+i}, v{vINV}, v{RS+8*m+i}", v(b + i) + v(vINV) + v(RS + 8 * m + i), v(b + i))
            for i in range(4):
                self.cvt(b + i, b + 2 * i, b + 2 * i + 1)
            for i in range(4):
                self.valu(f"v_pk_max_i16 v{b+i}, v{b+i}, 0", v(b + i), v(b + i))
            va = voff if voff is not None else (vSTT if n == 6 else vST)
            stores.append(self.add(Op("S", f"buffer_store_dwordx4 {vr(b,4)}, v{va}, s[12:15], s{sST} offen offset:{m*64}",
                                      v(b, 4) + v(va) + s(12, 4) + s(sST), ["vmorder"])))
        return stores


PV_ORDERS = {
    "late2": [(c, st) for c in range(4) for st in (3, 0, 1)][:6] + ["z0"] + [(c, st) for c in range(4) for st in (3, 0, 1)][6:]
             + ["z1"] + [(c, 2) for c in range(4)],
    "chain": ["z0", "z1"] + [(c, st) for c in range(4) for st in (3, 0, 1, 2)],
    "mid": [(0, 3), (0, 0), (0, 1), (1, 3), (1, 0), (1, 1), "z0", "z1", (0, 2), (1, 2)]
           + [(c, st) for c in (2, 3) for st in (3, 0, 1, 2)],
}

QORDER = [4, 5, 3, 2, 1, 0]


def build_units(nunits, cfg):
    p = Prog()
    order = PV_ORDERS[cfg["pv"]]
    cuts = []
    last_dma = None
    p.unit = 0
    p.tag = "pre"
    p.load_e(XB[0], 0)
    for u in range(nunits):
        p.unit = u
        p.tag = "K0"
        first = p.proj_t(WK, XB[0], Kf(0, 0))
        cuts.append(first)
        p.tag = "ld1"
        p.load_e(XB[1], 1)
        if u > 0:
            p.unit = u - 1
            p.tag = "PV0"
            p.pv(order)
            p.tag = "EP0"
            p.epilogue(QORDER[-1])
            p.tag = "fin"
            p.sal(f"s_add_u32 s{sOB}, s{sOB}, s{sINC}", s(sOB) + s(sINC), s(sOB))
            p.sal(f"s_mov_b32 s{sINC}, {BATCH_BYTES}", [], s(sINC))
            p.sal(f"s_mov_b32 s14, s{sOUTSZ}", s(sOUTSZ), s(14))
            p.valu(f"v_cmp_lt_f32 vcc, s{sTHR}, v{vCHK}", v(vCHK) + s(sTHR), ["vcc"])
            p.valu(f"v_mov_b32 v{vCHK}, 0", [], v(vCHK))
            p.sal(f"s_or_b32 s{sTMP}, vcc_lo, vcc_hi", ["vcc"], s(sTMP))
            p.sal(f"s_min_u32 s{sTMP}, s{sTMP}, 1", s(sTMP), s(sTMP))
            p.sal(f"s_lshl1_add_u32 s{sMASK}, s{sMASK}, s{sTMP}", s(sMASK) + s(sTMP), s(sMASK))
            p.unit = u
        p.tag = "tail"
        rs = [p.dsr("ds_read_b128", Kf(6, k), 4, vKT, P_KT + 16 * k, "PK") for k in range(2)]
        rs += [p.dsr("ds_read_b128", QB + 4 * k, 4, vQT, 16 * k, "PK") for k in range(2)]
        for o in rs:
            o.earliest = first
        p.waitl(rs)
        rs = [p.dsr("ds_read_u16", VT + 2 * c, 1, vVT, 8 * c, "PK") for c in range(4)]
        rs += [p.dsr("ds_read_b128", RS + 4 * c, 4, vQT, P_R01 - P_QT + 2048 * (c >> 1) + 16 * (c & 1), "PK") for c in range(4)]
        for o in rs:
            o.earliest = first
        p.waitl(rs)
        p.valu(f"v_add_u32 v{vKT}, 128, v{vKT}", v(vKT), v(vKT))
        p.valu(f"v_add_u32 v{vQT}, 128, v{vQT}", v(vQT), v(vQT))
        p.valu(f"v_add_u32 v{vVT}, 512, v{vVT}", v(vVT), v(vVT))
        p.tag = "dma"
        dmas = []
        for m in range(12):
            p.sal(f"s_add_u32 m0, s{sDL}, {m*2*PIECE}", s(sDL), ["m0"])
            p.sal(f"s_add_u32 s{sDT}, s{sDG}, {m*2048}", s(sDG), s(sDT))
            o = p.add(Op("L", f"buffer_load_dwordx4 v{vDMA}, s[8:11], s{sDT} offen lds",
                         v(vDMA) + s(8, 4) + s(sDT) + ["m0", "Enext"], ["vmorder"]))
            o.earliest = first
            if dmas:
                o.after(dmas[-1], 0, cfg["dma_gap"])
            dmas.append(o)
        p.sal(f"s_add_u32 s{sDG}, s{sDG}, {BATCH_BYTES}", s(sDG), s(sDG))
        p.sal(f"s_sub_u32 s{sDL}, s{sSUM}, s{sDL}", s(sSUM) + s(sDL), s(sDL))
        p.sal(f"s_add_u32 s{sU}, s{sU}, 1", s(sU), s(sU)).earliest = first

        def vdst(t):
            return lambda c: Vf(t >> 1, c) + 2 * (t & 1)

        for t in range(4):
            p.tag = f"V{t}"
            p.proj_v(XB[t & 1], vdst(t))
            p.tag = f"ld{t+2}"
            p.load_e(XB[t & 1], t + 2)
            p.tag = f"K{t+1}"
            p.proj_t(WK, XB[(t + 1) & 1], Kf(t + 1, 0))
        p.tag = "K5"
        p.proj_t(WK, XB[1], Kf(5, 0))
        p.tag = "V4"
        p.proj_v(XB[0], vdst(4))
        p.tag = "S6"
        p.scores()
        p.tag = "V5"
        p.proj_v(XB[1], vdst(5))
        prev = 6
        for i, n in enumerate(QORDER):
            x = XB[i & 1]
            p.tag = f"Q{n}"
            p.proj_t(WQ, x, QB)
            p.tag = f"PV{prev}"
            p.pv(order)
            p.tag = f"EP{prev}"
            p.epilogue(prev)
            p.tag = f"S{n}"
            p.scores()
            p.tag = f"R{n}"
            p.proj_r(x, RS)
            if i + 2 < 6:
                p.tag = f"lq{QORDER[i+2]}"
                rs, w = p.load_e(x, QORDER[i + 2])
                lastw = w
            elif i == 4:
                p.unit = u + 1
                p.tag = "bar"
                wv = p.sal("s_waitcnt vmcnt(?)", [], [], wait=("vm", dmas))
                wv.after(lastw).after(dmas[-1])
                p.sal("s_barrier", [], ["E", "Enext"]).after(wv)
                p.valu(f"v_add_u32 v{vE}, s{sDELTA}, v{vE}", v(vE) + s(sDELTA), v(vE))
                p.sal(f"s_sub_u32 s{sDELTA}, 0, s{sDELTA}", s(sDELTA), s(sDELTA))
                p.tag = "pre"
                p.load_e(x, 0)
                p.unit = u
            prev = n
    return p, cuts


def build_tail_block():
    p = Prog()
    X, PK, RT = KB, KB + 16, KB + 32
    p.tag = "tb"
    p.load_e(X, 0, addr=vTE, mem="TE")
    p.proj_r(X, RT)
    for c in range(4):
        p.dsw(RT + 4 * c, vPW, P_R01 + 2048 * (c >> 1) + 16 * (c & 1), f"PK{c}")
    p.proj_t(WK, X, PK)
    for k in range(2):
        p.dsw(PK + 4 * k, vPW, P_KT + 16 * k, f"PK{4+k}")
    p.proj_t(WQ, X, PK + 8)
    for k in range(2):
        p.dsw(PK + 8 + 4 * k, vPW, P_QT + 16 * k, f"PK{6+k}")
    p.proj_v(X, lambda c: PK + 2 * c)
    for k in range(2):
        p.dsw(PK + 4 * k, vPW, P_VT + 16 * k, f"PK{8+k}")
    p.valu(f"v_add_u32 v{vTE}, {2*TILE}, v{vTE}", v(vTE), v(vTE))
    p.valu(f"v_subrev_u32 v{vKT}, 512, v{vKT}", v(vKT), v(vKT))
    p.valu(f"v_subrev_u32 v{vQT}, 512, v{vQT}", v(vQT), v(vQT))
    p.valu(f"v_subrev_u32 v{vVT}, 2048, v{vVT}", v(vVT), v(vVT))
    return p


SL_V = 56
SL_X = 120
SL_M = 136
SL_T = 137
SL_L = 138
SL_NEG = 139
SL_E = 140


def build_slow_kv():
    p = Prog()
    p.tag = "skv"
    for c in range(4):
        for i in (2, 3):
            r = SL_V + 48 + 4 * c + i
            p.valu(f"v_mov_b32 v{r}, 0", [], v(r))
    for t in range(7):
        p.load_e(SL_X, t, addr=SL_E, mem="SE")
        p.proj_t(WK, SL_X, Kf(t, 0))
        p.proj_v(SL_X, lambda c: SL_V + (t >> 1) * 16 + 4 * c + 2 * (t & 1))
    return p


def build_slow_q():
    p = Prog()
    p.tag = "sq"
    p.load_e(SL_X, 0, addr=SL_E, mem="SE")
    p.valu(f"v_add_u32 v{SL_E}, {TILE}, v{SL_E}", v(SL_E), v(SL_E))
    p.proj_t(WQ, SL_X, QB)
    p.proj_r(SL_X, RS)
    for t in range(7):
        for u in range(2):
            p.mfma(SB + 4 * t, ("v", Kf(t, u)), ("v", QB + 4 * u), u == 0)
    for i in range(4):
        r = SB + 24 + i
        p.valu(f"v_cndmask_b32 v{r}, v{SL_NEG}, v{r}, s[{sT2}:{sT3}]", v(r) + v(SL_NEG) + s(sT2, 2), v(r))

    def allreduce(reg, op):
        for sw in ("v_permlane16_swap_b32", "v_permlane32_swap_b32"):
            p.valu(f"v_mov_b32 v{SL_T}, v{reg}", v(reg), v(SL_T))
            p.valu(f"{sw} v{reg}, v{SL_T}", v(reg) + v(SL_T), v(reg) + v(SL_T), "P")
            p.valu(f"{op} v{reg}, v{reg}, v{SL_T}", v(reg) + v(SL_T), v(reg))

    p.valu(f"v_max_f32 v{SL_M}, v{SB}, v{SB+1}", v(SB, 2), v(SL_M))
    for i in range(2, 28, 2):
        p.valu(f"v_max3_f32 v{SL_M}, v{SL_M}, v{SB+i}, v{SB+i+1}", v(SL_M) + v(SB + i, 2), v(SL_M))
    allreduce(SL_M, "v_max_f32")
    for i in range(28):
        r = SB + i
        p.valu(f"v_sub_f32 v{r}, v{r}, v{SL_M}", v(r) + v(SL_M), v(r))
        p.valu(f"v_exp_f32 v{r}, v{r}", v(r), v(r), "T")
    p.valu(f"v_add_f32 v{SL_L}, v{SB}, v{SB+1}", v(SB, 2), v(SL_L))
    for i in range(2, 28):
        p.valu(f"v_add_f32 v{SL_L}, v{SL_L}, v{SB+i}", v(SL_L) + v(SB + i), v(SL_L))
    allreduce(SL_L, "v_add_f32")
    p.valu(f"v_rcp_f32 v{vINV}, v{SL_L}", v(SL_L), v(vINV), "T")
    for i in range(14):
        p.cvt(PB + i, SB + 2 * i, SB + 2 * i + 1)
    for c in range(4):
        for st in range(4):
            p.mfma(CX + 4 * c, ("v", SL_V + 16 * st + 4 * c), ("v", PB + 4 * st), st == 0)
    p.finish(0, voff=vST)
    p.sal(f"s_add_u32 s{sOB}, s{sOB}, 4096", s(sOB), s(sOB))
    return p


def schedule(ops):
    sc = Sched(ops)
    out = merge_nops(sc.run())
    resolve_waits(out)
    return out, sc


def raw(text, nops=1):
    return Op("X", text, nops=nops, tag="raw")


def lines(seq):
    return "".join(f"    {o.text}\n" for o in seq)


def prologue():
    T = []
    e = T.append
    L, A0, A1, A2, A3, vW, vWR, t0, t1, t2, t3, J, R4 = range(1, 14)
    e("s_cmp_ge_u32 s2, 256")
    e("s_cbranch_scc1 L_end")
    e("s_load_dwordx8 s[16:23], s[0:1], 0")
    e("s_load_dwordx4 s[24:27], s[0:1], 32")
    e(f"v_lshrrev_b32 v{t0}, 6, v0")
    e(f"v_and_b32 v{L}, 63, v0")
    e(f"v_readfirstlane_b32 s{sWID}, v{t0}")
    e(f"v_lshrrev_b32 v{J}, 4, v{L}")
    e(f"v_lshrrev_b32 v{t0}, 3, v{L}")
    e(f"v_and_b32 v{t1}, 7, v{L}")
    e(f"s_and_b32 s{sH}, s{sWID}, 1")
    e(f"s_lshr_b32 s{sP}, s{sWID}, 1")
    e(f"v_and_b32 v{t2}, 2, v{t0}")
    e(f"s_lshl_b32 s{sT0}, s{sH}, 2")
    e(f"v_or_b32 v{t2}, s{sT0}, v{t2}")
    e(f"v_xor_b32 v{t1}, v{t1}, v{t2}")
    e(f"v_lshlrev_b32 v{t1}, 4, v{t1}")
    e(f"v_lshl_add_u32 v{vW}, v{t0}, 7, v{t1}")
    e(f"v_lshl_add_u32 v{vWR}, v{t0}, 8, v{t1}")
    e(f"v_and_b32 v{t0}, 15, v{L}")
    e(f"v_xor_b32 v{t0}, v{t0}, v{J}")
    e(f"v_lshlrev_b32 v{t0}, 4, v{t0}")
    e(f"v_lshl_add_u32 v{vDMA}, v{J}, 8, v{t0}")
    e(f"s_lshl_b32 s{sT0}, s2, 1")
    e(f"s_add_u32 s{sT0}, s{sT0}, s{sP}")
    e(f"s_mul_i32 s{sOB}, s{sT0}, {8*BATCH_BYTES}")
    e(f"s_lshl_b32 s{sT1}, s{sWID}, 10")
    e("s_mov_b32 s30, 32768")
    e("s_mov_b32 s31, 0x20000")
    e("s_mov_b32 s11, 0x20000")
    e("s_mov_b32 s15, 0x20000")
    e("s_mov_b32 s14, 0")
    e(f"s_add_u32 s10, s{sOB}, {8*BATCH_BYTES}")
    e("s_waitcnt lgkmcnt(0)")
    e("s_mov_b32 s8, s16")
    e("s_mov_b32 s9, s17")
    e("s_mov_b32 s12, s26")
    e("s_mov_b32 s13, s27")

    def wdma(ptr, ldsbase, res=False):
        e(f"s_mov_b32 s28, s{ptr}")
        e(f"s_mov_b32 s29, s{ptr+1}")
        if res:
            e(f"s_lshl_b32 s{sT3}, s{sWID}, 11")
        for m in range(8):
            hh, q = m >> 2, m & 3
            e(f"s_add_u32 m0, s{sT1}, {ldsbase(hh) + q*4096}")
            if res:
                e(f"s_add_u32 s{sT2}, s{sT3}, {q*8192 + hh*128}")
            else:
                e(f"s_add_u32 s{sT2}, s{sT1}, {m*4096}")
            e(f"buffer_load_dwordx4 v{vWR if res else vW}, s[28:31], s{sT2} offen lds")

    wdma(18, lambda hh: WQSTG + hh * EBSZ)
    wdma(20, lambda hh: WSTG + hh * 16384)
    wdma(22, lambda hh: WSTG + 32768 + hh * 16384)
    wdma(24, lambda hh: WSTG + 65536 + hh * 16384, res=True)

    e(f"s_mul_i32 s{sT0}, s{sP}, {TILE}")
    e(f"s_mul_i32 s{sT2}, s{sH}, {2*PIECE}")
    e(f"s_add_u32 s{sC}, s{sT0}, s{sT2}")
    e(f"s_mul_i32 s{sT2}, s{sH}, {2*BATCH_BYTES}")
    e(f"s_add_u32 s{sTMP}, s{sOB}, s{sT2}")

    def taildma(g):
        for k in range(2):
            e(f"s_add_u32 m0, s{sC}, {TG0 + g*2*TILE + k*PIECE}")
            e(f"s_add_u32 s{sT2}, s{sTMP}, {(4*g + k)*BATCH_BYTES + 24576}")
            e(f"buffer_load_dwordx4 v{vDMA}, s[8:11], s{sT2} offen lds")

    taildma(0)
    e(f"s_mul_i32 s{sT0}, s{sP}, {EBSZ}")
    e(f"s_mul_i32 s{sT2}, s{sH}, {PIECE}")
    e(f"s_add_u32 s{sDL}, s{sT0}, s{sT2}")
    e(f"s_add_u32 s{sDL}, s{sDL}, {EB0}")
    e(f"s_lshl_b32 s{sT2}, s{sH}, 10")
    e(f"s_add_u32 s{sDG}, s{sOB}, s{sT2}")

    def edma(ms):
        for m in ms:
            e(f"s_add_u32 m0, s{sDL}, {m*2*PIECE}")
            e(f"s_add_u32 s{sT2}, s{sDG}, {m*2048}")
            e(f"buffer_load_dwordx4 v{vDMA}, s[8:11], s{sT2} offen lds")

    edma(range(4))

    e(f"v_and_b32 v{R4}, 3, v{L}")
    e(f"v_bfe_u32 v{t0}, v{L}, 2, 2")
    e(f"v_mul_u32_u24 v{t1}, {PIECE}, v{t0}")
    e(f"v_lshl_add_u32 v{t1}, v{R4}, 8, v{t1}")
    e(f"v_xor_b32 v{t2}, v{J}, v{R4}")
    e(f"v_lshl_add_u32 v{t1}, v{t2}, 4, v{t1}")
    e(f"s_add_u32 s{sT0}, s{sT0}, {EB0}")
    e(f"v_add_u32 v{vE}, s{sT0}, v{t1}")
    e(f"s_mul_i32 s{sT0}, s{sP}, {TILE}")
    e(f"s_add_u32 s{sT0}, s{sT0}, {TG0}")
    e(f"v_add_u32 v{vTE}, s{sT0}, v{t1}")
    e(f"v_and_b32 v{t1}, 15, v{L}")
    e(f"v_lshlrev_b32 v{t2}, 8, v{t1}")
    e(f"v_lshl_add_u32 v{t2}, v{J}, 4, v{t2}")
    e(f"s_lshl_b32 s{sT0}, s{sH}, 7")
    e(f"v_add_u32 v{vST}, s{sT0}, v{t2}")
    e(f"s_mul_i32 s{sT0}, s{sWID}, 10240")
    e(f"s_add_u32 s{sT0}, s{sT0}, {PARK}")
    e(f"v_lshl_add_u32 v{vPW}, v{L}, 5, s{sT0}")
    e(f"v_cmp_gt_u32 vcc, 4, v{t1}")
    e(f"v_mov_b32 v{t3}, 0x80000000")
    e(f"v_add_u32 v{t2}, {P_QT + 512}, v{vPW}")
    e(f"v_cndmask_b32 v{vSTT}, v{t3}, v{vST}, vcc")
    e(f"v_mov_b32 v{t3}, {ZERO + 512}")
    e(f"v_cndmask_b32 v{vQT}, v{t3}, v{t2}, vcc")
    e(f"v_lshl_add_u32 v{t2}, v{J}, 4, v{t0}")
    e(f"v_lshl_add_u32 v{t2}, v{t2}, 5, s{sT0}")
    e(f"v_cmp_eq_u32 vcc, 0, v{R4}")
    e(f"v_add_u32 v{t2}, 512, v{t2}")
    e(f"v_lshlrev_b32 v{t1}, 5, v{t1}")
    e(f"v_cndmask_b32 v{vKT}, v{t3}, v{t2}, vcc")
    e(f"v_lshl_add_u32 v{t1}, v{J}, 1, v{t1}")
    e(f"s_add_u32 s{sT0}, s{sT0}, {P_VT + 2048}")
    e(f"v_add_u32 v{vVT}, s{sT0}, v{t1}")
    e(f"v_cmp_eq_u32 vcc, 2, v{R4}")
    e(f"v_mov_b32 v{t1}, 0x44444444")
    e(f"v_mov_b32 v{t2}, 0xeeeeeeee")
    e(f"v_cndmask_b32 v{vIDX}, v{t1}, v{t2}, vcc")
    for i in range(4):
        e(f"v_mov_b32 v{ONES+i}, 0x3f803f80")
    for r in list(range(VT, VT + 8)) + [PB + 13, PB + 14, PB + 15, vCHK]:
        e(f"v_mov_b32 v{r}, 0")
    e(f"v_lshlrev_b32 v{t1}, 3, v{L}")
    e(f"ds_write_b64 v{t1}, v[{VT}:{VT+1}] offset:{ZERO}")
    e(f"s_mov_b32 s{sU}, 0")
    e(f"s_mov_b32 s{sMASK}, 0")
    e(f"s_mov_b32 s{sTHR}, {f32bits(THRESH):#x}")
    e(f"s_mov_b32 s{sOUTSZ}, {TOTAL_BYTES}")
    e(f"s_mov_b32 s{sDELTA}, {EDELTA}")

    e(f"v_bfe_u32 v{t1}, v{L}, 3, 2")
    e(f"v_lshlrev_b32 v{t2}, 10, v{J}")
    e(f"v_lshl_add_u32 v{t2}, v{t0}, 7, v{t2}")
    for t, A in enumerate((A0, A1, A2, A3)):
        e(f"v_xor_b32 v{t3}, {t}, v{t1}")
        e(f"v_lshl_add_u32 v{A}, v{t3}, 5, v{t2}")
        e(f"v_lshl_add_u32 v{A}, v{R4}, 3, v{A}")
    B0, B1 = vW, vWR
    e(f"v_lshlrev_b32 v{t1}, 1, v{t1}")
    e(f"v_xor_b32 v{t1}, v{t1}, v{R4}")
    e(f"s_lshl_b32 s{sT0}, s{sH}, 14")
    e(f"s_add_u32 s{sT0}, s{sT0}, {WSTG}")
    e(f"v_add_u32 v{t2}, s{sT0}, v{t2}")
    e(f"v_lshl_add_u32 v{t0}, v{t1}, 4, v{t2}")
    e(f"v_xor_b32 v{t1}, 4, v{t1}")
    e(f"v_lshl_add_u32 v{t3}, v{t1}, 4, v{t2}")
    e(f"v_add_u32 v{B0}, 32768, v{t0}")
    e(f"v_add_u32 v{B1}, 32768, v{t3}")
    e(f"s_mul_i32 s{sT2}, s{sH}, {EBSZ}")
    e(f"s_add_u32 s{sT2}, s{sT2}, {WQSTG}")
    for A in (A0, A1, A2, A3):
        e(f"v_add_u32 v{A}, s{sT2}, v{A}")
    e(f"s_sub_u32 s{sT0}, s{sT0}, s{sT2}")

    TQ = 16
    e("s_waitcnt vmcnt(30)")
    e("s_barrier")
    for c in range(4):
        for st in range(4):
            for hf in range(2):
                r = TQ + (c * 4 + st) * 4 + 2 * hf
                e(f"ds_read_b64_tr_b16 v[{r}:{r+1}], v{(A0,A1,A2,A3)[c]} offset:{st*4096 + hf*512}")
    for A in (A0, A1, A2, A3):
        e(f"v_add_u32 v{A}, s{sT0}, v{A}")
    e("s_waitcnt vmcnt(22) lgkmcnt(0)")
    e("s_barrier")
    edma(range(4, 12))
    for c in range(4):
        for st in range(4):
            for hf in range(2):
                r = wfrag(WK, c, st) + 2 * hf
                e(f"ds_read_b64_tr_b16 a[{r}:{r+1}], v{(A0,A1,A2,A3)[c]} offset:{st*4096 + hf*512}")
    e(f"s_mov_b32 s{sT2}, {f32bits(QSCALE):#x}")
    e(f"s_mov_b32 s{sT3}, s{sT2}")
    TP = 80
    for i in range(0, 64, 4):
        for k in range(4):
            e(f"v_lshlrev_b32 v{TP+2*k}, 16, v{TQ+i+k}")
            e(f"v_and_b32 v{TP+2*k+1}, 0xffff0000, v{TQ+i+k}")
        for k in range(4):
            e(f"v_pk_mul_f32 v[{TP+2*k}:{TP+2*k+1}], v[{TP+2*k}:{TP+2*k+1}], s[{sT2}:{sT3}]")
        for k in range(4):
            e(f"v_cvt_pk_bf16_f32 v{TP+2*k}, v{TP+2*k}, v{TP+2*k+1}")
        for k in range(4):
            e(f"v_accvgpr_write_b32 a{WQ+i+k}, v{TP+2*k}")
    e("s_waitcnt vmcnt(8)")
    e("s_barrier")
    for base, off in ((WV, 0), (WR, 32768)):
        for c in range(4):
            for st in range(4):
                for hf in range(2):
                    r = wfrag(base, c, st) + 2 * hf
                    e(f"ds_read_b64_tr_b16 a[{r}:{r+1}], v{(B0,B1)[c>>1]} offset:{off + st*4096 + hf*512 + (c&1)*8}")
    e(f"s_add_u32 s{sDG}, s{sDG}, {BATCH_BYTES}")
    e(f"s_lshl_b32 s{sSUM}, s{sDL}, 1")
    e(f"s_add_u32 s{sSUM}, s{sSUM}, {EDELTA}")
    e(f"s_add_u32 s{sDL}, s{sDL}, {EDELTA}")
    e(f"s_mov_b32 s{sINC}, 0")
    e(f"s_mov_b32 s{sST}, s{sOB}")
    e("s_waitcnt lgkmcnt(0)")
    e("s_barrier")
    taildma(1)
    return "".join(("    " + x + "\n") for x in T)


def slow_path(kv, q):
    T = []
    e = T.append
    e("L_slow:")
    e("s_waitcnt vmcnt(0)")
    e(f"s_mul_i32 s{sDL}, s{sWID}, 40960")
    e(f"s_lshl_b32 s{sT0}, s2, 1")
    e(f"s_add_u32 s{sT0}, s{sT0}, s{sP}")
    e(f"s_lshl_b32 s{sDG}, s{sT0}, 3")
    e(f"s_add_u32 s{sDG}, s{sDG}, 7")
    e(f"s_mov_b32 s{sT2}, 0xffff")
    e(f"s_mov_b32 s{sT3}, 0")
    e(f"v_mov_b32 v{SL_NEG}, 0xff800000")
    e(f"s_mul_i32 s{sT0}, s{sP}, {TILE}")
    e(f"s_add_u32 s{sT0}, s{sT0}, {TG0 + 4*TILE}")
    e(f"s_sub_u32 s{sT0}, s{sDL}, s{sT0}")
    e(f"v_add_u32 v{vTE}, s{sT0}, v{vTE}")
    e(f"s_mov_b32 s10, {BATCH_BYTES}")
    e(f"s_mov_b32 s14, {BATCH_BYTES}")
    e("L_slow_next:")
    e(f"s_ff1_i32_b32 s{sT0}, s{sMASK}")
    e(f"s_bitset0_b32 s{sMASK}, s{sT0}")
    e(f"s_sub_u32 s{sT0}, s{sDG}, s{sT0}")
    e(f"s_mul_i32 s{sT0}, s{sT0}, {BATCH_BYTES}")
    e(f"s_add_u32 s8, s16, s{sT0}")
    e("s_addc_u32 s9, s17, 0")
    e(f"s_add_u32 s12, s26, s{sT0}")
    e("s_addc_u32 s13, s27, 0")
    e(f"s_mov_b32 m0, s{sDL}")
    e(f"s_mov_b32 s{sDT}, 0")
    e("L_slow_dma:")
    e(f"buffer_load_dwordx4 v{vDMA}, s[8:11], s{sDT} offen lds")
    e(f"s_add_u32 m0, m0, {PIECE}")
    e(f"s_add_u32 s{sDT}, s{sDT}, 1024")
    e(f"s_cmp_lt_u32 s{sDT}, {28*1024}")
    e("s_cbranch_scc1 L_slow_dma")
    e(f"v_mov_b32 v{SL_E}, v{vTE}")
    e(f"s_mov_b32 s{sOB}, 0")
    e("s_waitcnt vmcnt(0)")
    txt = "".join(("" if x.endswith(":") else "    ") + x + "\n" for x in T)
    txt += lines(kv)
    txt += "L_slow_q:\n" + lines(q)
    txt += f"    s_cmp_lt_u32 s{sOB}, {7*4096}\n    s_cbranch_scc1 L_slow_q\n"
    txt += f"    s_cmp_lg_u32 s{sMASK}, 0\n    s_cbranch_scc1 L_slow_next\n"
    return txt


def generate(cfg, verbose=True):
    p, cuts = build_units(4, cfg)
    seq, sc = schedule(p.ops)
    pos = {id(o): i for i, o in enumerate(seq)}
    c1, c2, c3 = pos[id(cuts[1])], pos[id(cuts[2])], pos[id(cuts[3])]
    body = seq[c2:c3]
    assert [o.text for o in seq[c1:c2]] == [o.text for o in body], "schedule is not periodic"
    period = cuts[3].t - cuts[2].t
    pre = [o for o in seq[c1:c2] if o.unit == 2]
    for o in pre:
        assert o.tag in ("bar", "pre", "ld1", "nop", "dma"), (o.tag, o.text)
    pre_keep = [o for o in pre if o.kind == "D" or (o.tag == "dma" and o.kind == "X")]

    left = [o for o in p.ops if o.unit == 2 and pos[id(o)] >= c3]
    dops = []
    for o in left:
        n = Op(o.kind, o.text, o.rd, o.wr, o.cd, tag=o.tag, dpp=o.dpp)
        assert not o.wait
        dops.append(n)
    drain, dsc = schedule(dops)
    tb, tsc = schedule(build_tail_block().ops)
    skv, _ = schedule(build_slow_kv().ops)
    sq, _ = schedule(build_slow_q().ops)

    ctl = [raw(f"s_and_b32 s{sTMP}, s{sU}, 3"), raw("s_cbranch_scc1 L_body")]
    last_m = max(i for i, o in enumerate(body) if o.kind in MFMA)
    if all(o.kind != "X" for o in body[last_m + 1:]):
        body = body[:last_m + 1] + [ctl[0]] + body[last_m + 1:] + [ctl[1]]
    else:
        body = body + ctl
    ctl2 = [raw(f"s_cmp_lt_u32 s{sU}, 8"), raw("s_cbranch_scc1 L_tail")]
    pad_drain = [raw("s_nop 7", 8)]
    tb_end = [raw(f"s_cmp_lg_u32 s{sU}, 0"), raw("s_cbranch_scc1 L_body")]
    first_sync = [raw("s_waitcnt vmcnt(2)"), raw("s_barrier")]
    sq_pad = [raw("s_nop 3", 4)]

    bad = 0
    bad += check_hazards(body + body + body, "loop")
    bad += check_hazards(body + ctl2 + tb + tb_end + body, "tailblock")
    bad += check_hazards(body + ctl2 + pad_drain + drain, "drain")
    bad += check_hazards(pre_keep + tb + tb_end + first_sync + body, "entry")
    bad += check_hazards(skv + sq + sq_pad + sq + sq_pad + skv, "slow")
    assert bad == 0

    if verbose:
        nm = sum(PIPE[o.kind] for o in body if o.kind in MFMA)
        cnt = {}
        for o in body:
            cnt[o.kind] = cnt.get(o.kind, 0) + 1
        print(f"period {period} cycles, pipe {nm}, counts {cnt}", file=sys.stderr)
        st = {}
        bb = sc.backbone
        for m, x in zip(bb, sc.stall):
            if c2 <= pos[id(m)] < c3:
                st[m.tag] = st.get(m.tag, 0) + x
        print("stalls:", {k: x for k, x in st.items() if x}, file=sys.stderr)
        print(f"tail block {tsc.t} cycles, drain {dsc.t} cycles", file=sys.stderr)

    src = HEADER
    src += prologue()
    src += lines(pre_keep)
    src += "L_tail:\n" + lines(tb) + lines(tb_end) + lines(first_sync)
    src += ".p2align 6\n" if cfg.get("align") else ""
    src += "L_body:\n" + lines(body) + lines(ctl2) + lines(pad_drain) + lines(drain)
    src += f"    s_barrier\n    s_and_b32 s{sMASK}, s{sMASK}, 0xff\n    s_cbranch_scc0 L_end\n"
    src += slow_path(skv, sq + sq_pad)
    src += FOOTER
    return src


HEADER = f"""; AutoInt attention interaction layer, B=4096 F=100 D=128 H=2 (generated by gen/gen.py)
; kernarg: e, wq, wk, wv, wres, out, debug, ws
; @launch grid=(256,1,1) block=(256,1,1) lds={LDS_BYTES}
.amdgcn_target "amdgcn-amd-amdhsa--gfx950"
.text
.globl {NAME}_kernel
.p2align 8
.type {NAME}_kernel,@function
{NAME}_kernel:
"""

FOOTER = f"""L_end:
    s_endpgm
.section .rodata,"a"
.p2align 6
.amdhsa_kernel {NAME}_kernel
  .amdhsa_next_free_vgpr 512
  .amdhsa_next_free_sgpr 64
  .amdhsa_accum_offset 256
  .amdhsa_group_segment_fixed_size 0
  .amdhsa_kernarg_size 64
  .amdhsa_user_sgpr_count 2
  .amdhsa_user_sgpr_kernarg_segment_ptr 1
  .amdhsa_system_sgpr_workgroup_id_x 1
  .amdhsa_float_denorm_mode_32 3
.end_amdhsa_kernel
"""

DEFAULT = dict(pv="chain", dma_gap=200, align=True)

if __name__ == "__main__":
    cfg = dict(DEFAULT)
    out = f"cdna_kernels/{NAME}.s"
    for arg in sys.argv[1:]:
        k, val = arg.split("=")
        if k == "out":
            out = val
        else:
            cfg[k] = int(val) if val.lstrip("-").isdigit() else val
    open(out, "w").write(generate(cfg))
```

```python
import os, sys, subprocess, struct, time
import numpy as np
sys.path.insert(0, "cdna_kernels")

CLANG = "clang"

TEMPLATE = """; @launch grid=({grid},1,1) block=({block},1,1) lds={lds}
.amdgcn_target "amdgcn-amd-amdhsa--gfx950"
.text
.globl mb_kernel
.p2align 8
.type mb_kernel,@function
mb_kernel:
    s_load_dwordx4 s[4:7], s[0:1], 0
    s_waitcnt lgkmcnt(0)
    s_mov_b32 s8, s4
    s_mov_b32 s9, s5
    s_mov_b32 s10, {in_bytes}
    s_mov_b32 s11, 0x20000
    s_mov_b32 s12, s6
    s_mov_b32 s13, s7
    s_mov_b32 s14, {out_bytes}
    s_mov_b32 s15, 0x20000
    v_lshlrev_b32 v1, 4, v0
{init}
    s_waitcnt vmcnt(0)
{pre}
    s_mov_b32 s20, {iters}
    s_barrier
    s_memtime s[16:17]
    s_memrealtime s[22:23]
    s_waitcnt lgkmcnt(0)
    .p2align 6
L_loop:
{body}
    s_sub_u32 s20, s20, 1
    s_cmp_lg_u32 s20, 0
    s_cbranch_scc1 L_loop
    s_waitcnt vmcnt(0) lgkmcnt(0)
    s_nop 15
    s_nop 15
    s_memtime s[18:19]
    s_memrealtime s[24:25]
    s_waitcnt lgkmcnt(0)
    s_sub_u32 s18, s18, s16
    s_sub_u32 s24, s24, s22
    v_lshrrev_b32 v2, 6, v0
    s_mul_i32 s3, s2, {waves}
    v_add_u32 v2, s3, v2
    v_lshlrev_b32 v2, 3, v2
    v_mov_b32 v4, s18
    v_mov_b32 v5, s24
    v_and_b32 v3, 63, v0
    v_cmp_eq_u32 vcc, 0, v3
    s_and_saveexec_b64 s[26:27], vcc
    buffer_store_dwordx2 v[4:5], v2, s[12:15], 0 offen
    s_waitcnt vmcnt(0)
    s_endpgm
.section .rodata,"a"
.p2align 6
.amdhsa_kernel mb_kernel
  .amdhsa_next_free_vgpr {nvgpr}
  .amdhsa_next_free_sgpr 96
  .amdhsa_accum_offset {accum}
  .amdhsa_group_segment_fixed_size 0
  .amdhsa_kernarg_size 16
  .amdhsa_user_sgpr_count 2
  .amdhsa_user_sgpr_kernarg_segment_ptr 1
  .amdhsa_system_sgpr_workgroup_id_x 1
  .amdhsa_float_denorm_mode_32 3
.end_amdhsa_kernel
.amdgpu_metadata
---
amdhsa.version: [1, 2]
amdhsa.kernels:
  - .name: mb_kernel
    .symbol: mb_kernel.kd
    .kernarg_segment_size: 16
    .kernarg_segment_align: 8
    .group_segment_fixed_size: 0
    .private_segment_fixed_size: 0
    .wavefront_size: 64
    .sgpr_count: 96
    .vgpr_count: {nvgpr}
    .max_flat_workgroup_size: {block}
    .args:
      - {{.name: kernargs, .size: 16, .offset: 0, .value_kind: by_value}}
...
.end_amdgpu_metadata
"""

IN_BYTES = 1 << 20


def make_src(body, grid=256, block=256, lds=0, iters=2000, nvgpr=256, accum=128, pre="", ninit=120):
    init = []
    for r in range(8, ninit, 4):
        init.append(f"    buffer_load_dwordx4 v[{r}:{r+3}], v1, s[8:11], 0 offen offset:{((r//4)*64) % 4096}")
    waves = block // 64
    return TEMPLATE.format(grid=grid, block=block, lds=lds, in_bytes=IN_BYTES, out_bytes=grid * waves * 8,
                           init="\n".join(init), pre=pre, iters=iters, body=body, waves=waves,
                           nvgpr=nvgpr, accum=accum)


def assemble(src, name):
    os.makedirs("mbout", exist_ok=True)
    s = f"mbout/{name}.s"
    co = f"mbout/{name}.co"
    open(s, "w").write(src)
    r = subprocess.run([CLANG, "-x", "assembler", "-target", "amdgcn-amd-amdhsa", "-mcpu=gfx950", s, "-o", co],
                       capture_output=True, text=True)
    if r.returncode != 0:
        raise RuntimeError(r.stderr)
    return co


_state = {}


def run(name, body, grid=256, block=256, lds=0, iters=2000, nvgpr=256, accum=128, pre="", reps=3, zero=False, ninit=120):
    src = make_src(body, grid, block, lds, iters, nvgpr, accum, pre, ninit)
    co = assemble(src, name)
    if not os.path.exists("/dev/kfd"):
        return None
    import cdna_launch as cl
    key = "zero" if zero else "rand"
    if key not in _state:
        rng = np.random.default_rng(0)
        x = (rng.standard_normal(1 << 19) * 0.5).astype(np.float32)
        u = np.tile((x.view(np.uint32) >> 16).astype(np.uint16), IN_BYTES >> 20)
        if zero:
            u[:] = 0
        _state[key] = cl.DeviceBuffer.from_numpy(u)
    din = _state[key]
    waves = block // 64
    dout = cl.DeviceBuffer(grid * waves * 8)
    k = cl.AsmKernel(co, "mb_kernel")
    ka = struct.pack("<2Q", din.ptr, dout.ptr)
    res = []
    for _ in range(reps):
        k.launch((grid, 1, 1), (block, 1, 1), ka, lds)
        cl.hip_check(cl._hip.hipDeviceSynchronize())
        o = dout.to_numpy(np.uint32, (grid * waves, 2))
        cyc = np.median(o[:, 0]) / iters
        rt = np.median(o[:, 1])
        clk = np.median(o[:, 0]) / max(rt, 1) * 0.1
        c = o[:, 0].astype(np.float64) / iters
        res.append((cyc, clk, rt / 100.0, np.percentile(c, [0, 10, 50, 90, 100]), o[:, 1].max() / 100.0))
    k.unload()
    dout.free()
    return res


def report(name, body, per=1, **kw):
    r = run(name, body, **kw)
    if r is None:
        print(name, "assembled")
        return
    msg = f"{name:30s}"
    for x in r:
        p = x[3] / per
        msg += f" | {p[0]:6.2f} {p[1]:6.2f} {p[2]:6.2f} {p[3]:6.2f} {p[4]:6.2f} clk={x[1]:5.3f} tmax={x[4]:7.1f}"
    print(msg, flush=True)
```

```python
import ctypes, os, struct, sys
import numpy as np
sys.path.insert(0, "cdna_kernels")
from mblib import assemble
NB = 4096 * 25600
T = """.amdgcn_target "amdgcn-amd-amdhsa--gfx950"
.text
.globl mb_kernel
.p2align 8
.type mb_kernel,@function
mb_kernel:
    s_memrealtime s[22:23]
    s_load_dwordx4 s[4:7], s[0:1], 0
    s_load_dwordx2 s[16:17], s[0:1], 16
    s_waitcnt lgkmcnt(0)
    s_mov_b32 s8, s4
    s_mov_b32 s9, s5
    s_mov_b32 s10, {nb}
    s_mov_b32 s11, 0x20000
    s_mov_b32 s12, s6
    s_mov_b32 s13, s7
    s_mov_b32 s14, {nb}
    s_mov_b32 s15, 0x20000
    s_mov_b32 s18, 0x1000000
    s_mov_b32 s19, 0x20000
    v_lshlrev_b32 v1, 4, v0
    s_mul_i32 s20, s2, {wgstart}
    s_mov_b32 s21, {iters}
L_loop:
{body}
    s_add_u32 s20, s20, {step}
    s_sub_u32 s21, s21, 1
    s_cmp_lg_u32 s21, 0
    s_cbranch_scc1 L_loop
    s_waitcnt vmcnt(0)
    s_memrealtime s[24:25]
    s_waitcnt lgkmcnt(0)
    v_mov_b32 v4, s22
    v_mov_b32 v5, s24
    v_lshrrev_b32 v2, 6, v0
    s_mul_i32 s3, s2, {waves}
    v_add_u32 v2, s3, v2
    v_lshlrev_b32 v2, 3, v2
    buffer_store_dwordx2 v[4:5], v2, s[16:19], 0 offen
    s_endpgm
.section .rodata,"a"
.p2align 6
.amdhsa_kernel mb_kernel
  .amdhsa_next_free_vgpr 64
  .amdhsa_next_free_sgpr 64
  .amdhsa_accum_offset 64
  .amdhsa_group_segment_fixed_size 0
  .amdhsa_kernarg_size 24
  .amdhsa_user_sgpr_count 2
  .amdhsa_user_sgpr_kernarg_segment_ptr 1
  .amdhsa_system_sgpr_workgroup_id_x 1
.end_amdhsa_kernel
.amdgpu_metadata
---
amdhsa.version: [1, 2]
amdhsa.kernels:
  - .name: mb_kernel
    .symbol: mb_kernel.kd
    .kernarg_segment_size: 24
    .kernarg_segment_align: 8
    .group_segment_fixed_size: 0
    .private_segment_fixed_size: 0
    .wavefront_size: 64
    .sgpr_count: 64
    .vgpr_count: 64
    .max_flat_workgroup_size: {block}
    .args:
      - {{.name: kernargs, .size: 24, .offset: 0, .value_kind: by_value}}
...
.end_amdgpu_metadata
"""
def mk(name, mode, grid, block, unroll, contiguous, ld="", st=""):
    chunk = block * 16 * unroll
    iters = NB // (grid * chunk)
    assert iters * grid * chunk == NB, (name, NB / (grid * chunk))
    b = []
    for i in range(unroll):
        b.append(f"    s_add_u32 s{30+i}, s20, {i*block*16}")
    if mode in ("copy", "read"):
        for i in range(unroll):
            b.append(f"    buffer_load_dwordx4 v[{8+4*i}:{11+4*i}], v1, s[8:11], s{30+i} offen {ld}")
    if mode == "copy":
        for i in range(unroll):
            b.append(f"    s_waitcnt vmcnt({unroll-1})")
            b.append(f"    buffer_store_dwordx4 v[{8+4*i}:{11+4*i}], v1, s[12:15], s{30+i} offen {st}")
    if mode == "read":
        b.append(f"    s_waitcnt vmcnt({unroll})")
    if mode == "write":
        for i in range(unroll):
            b.append(f"    buffer_store_dwordx4 v[{8+4*i}:{11+4*i}], v1, s[12:15], s{30+i} offen {st}")
    src = T.format(nb=NB, wgstart=chunk * iters if contiguous else chunk, step=chunk if contiguous else chunk * grid,
                   iters=iters, body="\n".join(b), waves=block // 64, block=block)
    return (name, assemble(src, name), grid, block)
ks = [mk("read_plain", "read", 2560, 256, 5, False)]
for st in ("", "nt", "sc1", "sc0 sc1", "sc0", "sc0 nt", "sc1 nt"):
    ks.append(mk(f"write_{st.replace(' ', '_')}", "write", 2560, 256, 5, False, "", st))
    ks.append(mk(f"copy_nt_{st.replace(' ', '_')}", "copy", 2560, 256, 5, False, "nt", st))
for ld in ("sc1", "sc0 sc1", "sc0 nt", "sc1 nt"):
    ks.append(mk(f"read_{ld.replace(' ', '_')}", "read", 2560, 256, 5, False, ld, ""))
if os.path.exists("/dev/kfd"):
    import cdna_launch as cl
    hip = cl._hip
    src = cl.DeviceBuffer(NB); dst = cl.DeviceBuffer(NB); st = cl.DeviceBuffer(1 << 24)
    big = cl.DeviceBuffer(1 << 29); big2 = cl.DeviceBuffer(1 << 29)
    rd = cl.AsmKernel(ks[0][1], "mb_kernel")
    def pre(state):
        if state == "dirty":
            cl.hip_check(hip.hipMemset(ctypes.c_void_p(big.ptr), 1, 1 << 29))
        elif state == "clean":
            cl.hip_check(hip.hipMemset(ctypes.c_void_p(big.ptr), 1, 1 << 29))
            for j in range(5):
                rd.launch((ks[0][2], 1, 1), (256, 1, 1), struct.pack("<3Q", big2.ptr + j * NB, dst.ptr, st.ptr), 0)
        elif state == "restored":
            cl.hip_check(hip.hipMemset(ctypes.c_void_p(big.ptr), 1, 1 << 29))
            cl.hip_check(hip.hipMemset(ctypes.c_void_p(dst.ptr), 1, NB))
            cl.hip_check(hip.hipMemcpy(ctypes.c_void_p(src.ptr), ctypes.c_void_p(big2.ptr), NB, 3))
        cl.hip_check(hip.hipDeviceSynchronize())
    for name, co, grid, block in ks:
        k = cl.AsmKernel(co, "mb_kernel")
        msg = f"{name:28s}"
        for state in ("dirty", "clean"):
            ts = []
            for rep in range(5):
                pre(state)
                k.launch((grid, 1, 1), (block, 1, 1), struct.pack("<3Q", src.ptr, dst.ptr, st.ptr), 0)
                cl.hip_check(hip.hipDeviceSynchronize())
                o = st.to_numpy(np.uint32, (grid * block // 64, 2)).astype(np.int64)
                ts.append((o[:, 1].max() - o[:, 0].min()) / 100.0)
            msg += f" | {state} {np.median(ts):6.1f}"
        print(msg, flush=True)
```

```python
from mblib import *
def pre(expr):
    return """    v_and_b32 v20, 63, v0
    v_lshrrev_b32 v21, 4, v20
    v_bfe_u32 v22, v20, 2, 2
    v_and_b32 v23, 3, v20
    v_lshrrev_b32 v3, 6, v0
    v_lshlrev_b32 v3, 11, v3
""" + expr + "\n    v_add_u32 v2, v2, v3\n"
def addr(qs, gs, rs):
    return f"    v_mul_u32_u24 v2, {qs}, v21\n    v_mad_u32_u24 v2, v22, {gs}, v2\n    v_mad_u32_u24 v2, v23, {rs}, v2"
def t(name, expr, ins):
    report(name, "\n".join([ins] * 32), per=32 * 4, nvgpr=512, accum=256, iters=50, lds=65536, pre=pre(expr), reps=1)
print("LDS cycles per instruction (4 waves issuing back to back)")
for nm, a in (("q256 g16 r2", addr(256, 16, 2)), ("q64 g16 r2", addr(64, 16, 2)), ("q8 g32 r2", addr(8, 32, 2)), ("q64 g16 r4", addr(64, 16, 4)), ("q256 g16 r4", addr(256, 16, 4)), ("q32 g8 r2", addr(32, 8, 2))):
    t("w16 " + nm, a, "    ds_write_b16 v2, v8")
    t("w16hi " + nm, a, "    ds_write_b16_d16_hi v2, v8 offset:8")
for nm, a in (("q64 g16 r4", addr(64, 16, 4)), ("q256 g16 r4", addr(256, 16, 4))):
    t("w32 " + nm, a, "    ds_write_b32 v2, v8")
rd = """    v_and_b32 v24, 1, v21
    v_lshl_add_u32 v24, v22, 3, v24
    v_and_b32 v25, 1, v23
    v_lshl_add_u32 v24, v24, 3, v25
    v_lshlrev_b32 v24, 2, v24
    v_xor_b32 v25, v21, v23
    v_cmp_gt_u32 vcc, 2, v25
    v_mov_b32 v25, 0x8000
    s_nop 1
    v_cndmask_b32 v2, v25, v24, vcc"""
t("read2_b32 sparse A", rd, "    ds_read2_b32 v[30:31], v2 offset0:0 offset1:2")
t("read2st64 res", addr(16, 64, 4).replace("v22, 64", "v22, 64"), "    ds_read2st64_b32 v[30:31], v2 offset0:0 offset1:32")
t("read_b128 linear", addr(256, 64, 16), "    ds_read_b128 v[32:35], v2")
```
